```python
import torch

def _softmax(x, axis=-1):
    return torch.softmax(x, dim=axis)

def _gelu(x):
    return torch.nn.functional.gelu(x, approximate='tanh')

def _silu(x):
    return torch.nn.functional.silu(x)

def _sigmoid(x):
    return torch.sigmoid(x)

def _layernorm(x, axis=-1, eps=1e-05):
    m = x.mean(dim=axis, keepdim=True)
    v = x.var(dim=axis, keepdim=True, unbiased=False)
    return (x - m) / torch.sqrt(v + eps)

def _scatter_add(tgt, idx, src, axis=0):
    return tgt.clone().index_add_(axis, idx, src)

def _segment_sum(src, seg, n):
    out = torch.zeros((n,) + src.shape[1:], dtype=src.dtype)
    return out.index_add_(0, seg, src)

def _pad(x, pw):
    flat = tuple((v for pair in reversed(pw) for v in pair))
    return torch.nn.functional.pad(x, flat)
kernel_name = 'adaLN_cond__mha_block__moe_arch_mod__prompt'

def setup_inputs():

    _w = lambda a: (lambda t: t.to(torch.bfloat16) if t.is_floating_point() else t)(torch.as_tensor(a))

    def _A_setup():
        B, S, D, H = (1, 2048, 512, 32)
        return {'x': _w((lambda *s: torch.randn(*s, dtype=torch.bfloat16) * 0.05)(B, S, D)), 'wqkv': _w((lambda *s: torch.randn(*s, dtype=torch.bfloat16) * 0.05)(D, 3 * D)), 'wo': _w((lambda *s: torch.randn(*s, dtype=torch.bfloat16) * 0.05)(D, D))}
    _A_in = _A_setup()

    def _B_setup():
        B, S, D, F, C = (1, 2048, 512, 1792, 1)
        return {'x': _w((lambda *s: torch.randn(*s, dtype=torch.bfloat16) * 0.05)(B, S, D)), 'w_r': _w((lambda *s: torch.randn(*s, dtype=torch.bfloat16) * 0.05)(D)), 'w_gate': _w((lambda *s: torch.randn(*s, dtype=torch.bfloat16) * 0.05)(D, F)), 'w_up': _w((lambda *s: torch.randn(*s, dtype=torch.bfloat16) * 0.05)(D, F)), 'w_down': _w((lambda *s: torch.randn(*s, dtype=torch.bfloat16) * 0.05)(F, D))}
    _B_in = _B_setup()
    return {'A_x': _A_in['x'], 'A_wqkv': _A_in['wqkv'], 'A_wo': _A_in['wo'], 'B_x': _B_in['x'], 'B_w_r': _B_in['w_r'], 'B_w_gate': _B_in['w_gate'], 'B_w_up': _B_in['w_up'], 'B_w_down': _B_in['w_down'], 'c': _w((lambda *s: torch.randn(*s, dtype=torch.bfloat16) * 0.1)(1, 512) * 8.0), 'w_mod': _w((lambda *s: torch.randn(*s, dtype=torch.bfloat16) * 0.1)(512, 6 * 512) * 512 ** (-0.5) * 8.0)}

def reference(A_x, A_wqkv, A_wo, B_x, B_w_r, B_w_gate, B_w_up, B_w_down, c, w_mod):

    def _A_ref(x, wqkv, wo):
        B, S, D = x.shape
        H = 32
        Dh = D // H
        qkv = (lambda x, *d: x.permute(*d))((x @ wqkv).reshape(B, S, 3, H, Dh), 2, 0, 3, 1, 4)
        q, k, v = (qkv[0], qkv[1], qkv[2])
        scores = torch.einsum('bhqd,bhkd->bhqk', q, k) * Dh ** (-0.5)
        p = _softmax(scores, axis=-1)
        o = torch.einsum('bhqk,bhkd->bhqd', p, v)
        return (lambda x, *d: x.permute(*d))(o, 0, 2, 1, 3).reshape(B, S, D) @ wo

    def _B_ref(x, w_r, w_gate, w_up, w_down):
        B, S, D = x.shape
        C = 1
        r = x @ w_r
        idx = torch.argsort(-r, axis=-1)[:, :C]
        idx_e = (lambda x, n, axis: torch.repeat_interleave(x, n, dim=axis))(idx.reshape(B, C, 1), D, axis=2)
        x_sel = (lambda x, i, axis: torch.take_along_dim(x, i, dim=axis))(x, idx_e, axis=1)
        g = _silu(x_sel @ w_gate)
        u = x_sel @ w_up
        y = g * u @ w_down
        r_sel = _sigmoid((lambda x, i, axis: torch.take_along_dim(x, i, dim=axis))(r, idx, axis=1))
        y = y * r_sel.reshape(B, C, 1)
        b_off = (torch.arange(B) * S).reshape(B, 1)
        flat_idx = (idx + b_off).reshape(B * C)
        zero = (x * 0.0).reshape(B * S, D)
        upd = _scatter_add(zero, flat_idx, y.reshape(B * C, D), axis=0)
        return x + upd.reshape(B, S, D)
    x = A_x
    mod = (_silu(c) @ w_mod).reshape(c.shape[0], 6, 1, -1)
    sa, ca, ga, sb, cb, gb = (mod[:, 0].clone(), mod[:, 1].clone(), mod[:, 2].clone(), mod[:, 3].clone(), mod[:, 4].clone(), mod[:, 5].clone())
    h = _layernorm(x, axis=-1) * (1 + ca) + sa
    x = x + ga * _A_ref(h, A_wqkv, A_wo)
    h = _layernorm(x, axis=-1) * (1 + cb) + sb
    x = x + gb * _B_ref(h, B_w_r, B_w_gate, B_w_up, B_w_down)
    return x
```

```python
import re

TRANS = ('v_exp_f32', 'v_log_f32', 'v_rcp_f32', 'v_rsq_f32', 'v_sqrt_f32', 'v_sin_f32', 'v_cos_f32', 'v_exp_f16', 'v_rcp_iflag_f32')

def regs_of(tok):
    tok = tok.strip()
    if tok.startswith('-'):
        tok = tok[1:]
    if tok.startswith('abs(') or tok.startswith('|'):
        tok = tok.replace('abs(', '').replace(')', '').replace('|', '')
    m = re.fullmatch(r'([vas])(\d+)', tok)
    if m:
        return {(m.group(1), int(m.group(2)))}
    m = re.fullmatch(r'([vas])\[(\d+):(\d+)\]', tok)
    if m:
        return {(m.group(1), i) for i in range(int(m.group(2)), int(m.group(3)) + 1)}
    if tok == 'vcc':
        return {('s', 'vcc')}
    if tok == 'exec':
        return {('s', 'exec')}
    if tok == 'm0':
        return {('s', 'm0')}
    return set()

class Ins:
    def __init__(self, text):
        self.text = text
        t = text.split(';')[0].strip()
        self.is_label = t.endswith(':')
        self.is_dir = t.startswith('.')
        self.op = ''
        self.w = set(); self.r = set(); self.c = set()
        self.kind = 'other'
        if not t or self.is_label or self.is_dir:
            return
        parts = t.split(None, 1)
        self.op = parts[0]
        args = []
        if len(parts) > 1:
            args = [a.strip() for a in re.split(r',(?![^\[]*\])', parts[1])]
            last = args[-1].split()
            extra = last[1:]
            args[-1] = last[0] if last else ''
            self.mods = ' '.join(extra)
        else:
            self.mods = ''
        self.args = args
        op = self.op
        R = [regs_of(a) for a in args]
        U = lambda l: set().union(*l) if l else set()
        if op.startswith('v_mfma') or op.startswith('v_smfmac'):
            self.kind = 'mfma'
            self.passes = 8 if '32x32' in op else 4
            self.w = R[0]; self.ab = R[1] | R[2]; self.c = R[3] if len(R) > 3 else set()
            self.r = self.ab | self.c
        elif op.startswith('v_cmp'):
            self.kind = 'valu'; self.w = R[0]; self.r = U(R[1:])
        elif op.startswith('v_readfirstlane') or op.startswith('v_readlane'):
            self.kind = 'valu'; self.w = R[0]; self.r = U(R[1:]); self.lane = True
        elif op.startswith('v_permlane'):
            self.kind = 'valu'; self.w = R[0] | R[1]; self.r = R[0] | R[1]; self.perm = True
        elif op.startswith('v_accvgpr_write') or op.startswith('v_accvgpr_read') or op.startswith('v_accvgpr_mov'):
            self.kind = 'valu'; self.w = R[0]; self.r = U(R[1:])
        elif op.startswith('v_'):
            self.kind = 'valu'; self.w = R[0]; self.r = U(R[1:])
            if op.startswith('v_fmac') or op.startswith('v_dot2c') or op.startswith('v_writelane') or 'dpp' in op or 'sdwa' in op:
                self.r |= R[0]
            if op.startswith('v_cndmask') and len(args) == 3:
                self.r |= {('s', 'vcc')}
            if op in ('v_add_co_u32', 'v_addc_co_u32', 'v_sub_co_u32'):
                self.w = R[0] | R[1]; self.r = U(R[2:])
            if 'dpp' in op or 'row_' in self.mods or 'quad_perm' in self.mods:
                self.dpp = True
        elif op.startswith('buffer_load') or op.startswith('global_load'):
            self.kind = 'vmem'
            if 'lds' in self.mods.split() or args[-1] == 'lds':
                self.r = U(R) | {('s', 'm0')}; self.ldsdma = True
            else:
                self.w = R[0]; self.r = U(R[1:])
                if 'd16' in op: self.r |= R[0]
        elif op.startswith('buffer_store') or op.startswith('global_store'):
            self.kind = 'vmem'; self.r = U(R)
            if 'x3' in op or 'x4' in op:
                self.widestore = R[0] if op.startswith('buffer') else R[1]
        elif op.startswith('buffer_atomic'):
            self.kind = 'vmem'; self.r = U(R)
            if 'sc0' in self.mods: self.w = R[0]
        elif op.startswith('buffer_'):
            self.kind = 'vmem'
        elif op.startswith('ds_read') or op.startswith('ds_bpermute') or op.startswith('ds_swizzle'):
            self.kind = 'ds'; self.w = R[0]; self.r = U(R[1:])
        elif op.startswith('ds_'):
            self.kind = 'ds'; self.r = U(R)
        elif op.startswith('s_'):
            self.kind = 'salu'
            if op.startswith('s_cmp') or op.startswith('s_cbranch') or op in ('s_branch', 's_waitcnt', 's_nop', 's_barrier', 's_sleep', 's_setprio', 's_endpgm', 's_bitcmp1_b32', 's_bitcmp0_b32'):
                self.r = U(R)
            else:
                self.w = R[0] if R else set(); self.r = U(R[1:])
                if 'saveexec' in op: self.w |= {('s', 'exec')}
        self.trans = any(op.startswith(x) for x in TRANS)

    def states(self):
        if self.is_label or self.is_dir or not self.op:
            return 0
        if self.op == 's_nop':
            return int(self.args[0], 0) + 1
        return 1

def vonly(s): return {x for x in s if x[0] in 'va'}
def sonly(s): return {x for x in s if x[0] == 's'}

def need(p, c):
    n = 0
    if p.kind == 'valu':
        pw = vonly(p.w); sw = sonly(p.w)
        if pw:
            if c.kind == 'mfma' and pw & c.r: n = max(n, 2)
            if c.kind == 'valu':
                if (getattr(c, 'perm', False) or getattr(c, 'dpp', False)) and pw & c.r: n = max(n, 2)
                if getattr(c, 'lane', False) and pw & c.r: n = max(n, 1)
                if p.trans and not c.trans and pw & (c.r | c.w): n = max(n, 1)
            if p.trans and c.kind in ('vmem', 'ds') and pw & c.r: n = max(n, 1)
        if p.op.startswith('v_dot') and pw:
            if c.kind in ('valu', 'mfma', 'ds', 'vmem') and pw & (c.r | c.w):
                same_c = c.op == p.op and len(c.args) == 4 and not (pw & (regs_of(c.args[1]) | regs_of(c.args[2])))
                if not same_c: n = max(n, 3)
        if sw:
            if c.kind == 'valu' and sw & c.r: n = max(n, 4 if getattr(c, 'lane', False) else 2)
            if c.kind == 'vmem' and sw & c.r: n = max(n, 5)
            if c.kind == 'salu' and sw & c.r: n = max(n, 1)
            if c.kind == 'mfma' and ('s', 'exec') in sw: n = max(n, 4)
    if p.kind == 'mfma':
        big = p.passes == 8
        if c.kind == 'mfma':
            if p.w & c.ab: n = max(n, 12 if big else 8)
            if p.w & c.c and p.w != c.c: n = max(n, 10 if big else 6)
            if p.w & c.c and p.w == c.c and p.passes != c.passes: n = max(n, 10 if big else 6)
            if p.w & c.w and p.w != c.c and not (p.w == c.w and not c.c): n = max(n, 0)
        elif c.kind in ('valu', 'vmem', 'ds'):
            if p.w & (c.r | c.w): n = max(n, 12 if big else 8)
            if c.kind == 'valu' and p.c & c.w: n = max(n, 7 if big else 3)
    if p.kind == 'salu' and ('s', 'm0') in p.w and getattr(c, 'ldsdma', False): n = max(n, 1)
    if getattr(p, 'widestore', None) and c.kind in ('valu',) and p.widestore & c.w: n = max(n, 2)
    if getattr(p, 'widestore', None) and c.kind in ('ds', 'vmem') and p.widestore & c.w: n = max(n, 1)
    return n

WINDOW = 14

def required_pad(hist, c):
    dist = 0; pad = 0
    for p in reversed(hist):
        if dist > WINDOW: break
        if p.states() == 0: continue
        n = need(p, c)
        if n > dist: pad = max(pad, n - dist)
        dist += p.states()
    return pad

def hazard_pass(lines, verbose=False):
    ins = [Ins(l) for l in lines]
    out = []
    npad = 0
    for c in ins:
        if c.states():
            pad = required_pad(out, c)
            if pad:
                npad += 1
                while pad > 0:
                    k = min(pad, 16)
                    out.append(Ins(f"  s_nop {k-1}"))
                    pad -= k
        out.append(c)
    labels = {i.text.strip().split(':')[0]: n for n, i in enumerate(out) if i.is_label}
    problems = []
    for n, i in enumerate(out):
        if i.op.startswith('s_cbranch') or i.op == 's_branch':
            tgt = i.args[0]
            if tgt not in labels: continue
            hist = [x for x in out[max(0, n - 40):n + 1]]
            t = labels[tgt]
            seq = list(hist)
            cnt = 0
            for c in out[t:t + 40]:
                if c.states():
                    pad = required_pad(seq, c)
                    if pad: problems.append(f"edge {i.text.strip()} -> '{c.text.strip()}' needs {pad} more")
                    cnt += c.states()
                    if cnt > WINDOW: break
                    if c.op in ('s_branch', 's_endpgm'): break
                seq.append(c)
    return [i.text for i in out], npad, problems
```

```python
import sys
sys.path.insert(0, 'work')
from asmlib import hazard_pass

NAME = 'adaLN_cond__mha_block__moe_arch_mod__prompt'

W_EPOCH = 0x0
W_MODG = 0x1000
W_FLAG2 = 0x8000
W_FLAGO = 0x10000
W_BEST = 0x18000
W_ACT = 0x20000
W_STAT = 0x40000
W_ROW = 0x80000
W_STAMP = 0x900000
W_QF = 0x100000
W_KF = 0x300000
W_VF = 0x500000
W_OF = 0x700000
W_SIZE = 0xA00000

L_W = 0
L_XST = 98304
L_RED = 98304
L_P1W = 131072
L_MV = 147456
L_SVEC = 151552
L_STAT = 152576
L_O = 0
L_XCH = 32768
L_MW = 65536
L_VEC = 135168
L_PST = 139264
L_TOT = 143360
L_AV = 145408
L_PART = 149504
L_KEY = 150528
LDS_SIZE = 163840

sX, sWQKV, sWO, sWS, sOUT, sWMOD, sC, sWR, sGATE, sUP, sDOWN = 8, 12, 16, 20, 24, 28, 32, 36, 40, 44, 48
sWAVE, sTAG, sXC, sJ, sTB, sHP, sHEAD, sQB, sTILE, sCS, sSLICE, sKH, sI = range(52, 65)
sT = list(range(66, 80))
sMASKHI, sSPIN = 80, 81
sEX = 82
sVM = 84
sC8K, sC16K, sC24K = 86, 87, 88
sROLE, sFS, sUP_, sB0_, sKEY = 92, 93, 94, 95, 96
sST = 90
vSTAMP = 15

vO, vSA, vSB, vPA, vPB, vQ = 16, 32, 48, 64, 72, 80
vK0, vK1, vVA0, vVA1, vVB0, vVB1 = 84, 88, 92, 96, 100, 104
vAK, vAV = 108, 109

vXO, vVEC, vHOLD = 60, 61, 88
sLO = 100
sCAND, sIDX = 98, 97

QSCALE = 0x3eb8aa3b

def srd(b): return f"s[{b}:{b+3}]"

class G:
    def __init__(self, stop=99, stamps=False):
        self.L = []
        self.stop = stop
        self.stamps = stamps
        self.names = []
        self.uid = 0
    def e(self, s):
        for l in s.strip('\n').split('\n'):
            l = l.strip()
            if not l: continue
            self.L.append(l if l.endswith(':') else '  ' + l)
    def lab(self, base):
        self.uid += 1
        return f"L_{base}_{self.uid}"
    def stamp(self, name):
        if not self.stamps: return
        self.e(f"""s_waitcnt lgkmcnt(0)
        s_memrealtime s[{sST}:{sST+1}]
        s_waitcnt lgkmcnt(0)
        v_writelane_b32 v{vSTAMP}, s{sST}, {len(self.names)}""")
        self.e(f"""s_memtime s[{sST}:{sST+1}]
        s_waitcnt lgkmcnt(0)
        v_writelane_b32 v{vSTAMP}, s{sST}, {32 + len(self.names)}""")
        self.names.append(name)
    def spin_guard(self, top, done):
        self.e(f"""s_cmp_eq_u32 s{sSPIN}, 0
        s_cbranch_scc1 {done}
        s_sub_u32 s{sSPIN}, s{sSPIN}, 1
        s_branch {top}""")
    def bf16r(self, dst, src):
        self.e(f"v_cvt_pk_bf16_f32 v{dst}, v{src}, v{src}\nv_lshlrev_b32 v{dst}, 16, v{dst}")

    def entry(self):
        e = self.e
        e(f"""s_cmp_ge_u32 s2, 256
        s_cbranch_scc1 L_end
        s_load_dwordx2 s[{sC}:{sC+1}], s[0:1], 64
        s_load_dwordx2 s[{sWMOD}:{sWMOD+1}], s[0:1], 72
        s_load_dwordx2 s[{sWS}:{sWS+1}], s[0:1], 96
        s_load_dwordx2 s[{sX}:{sX+1}], s[0:1], 0
        s_load_dwordx2 s[{sWQKV}:{sWQKV+1}], s[0:1], 8""")
        if self.stamps:
            e(f"v_mov_b32 v{vSTAMP}, 0")
        sizes = {sX: 0x200000, sWQKV: 512*3072, sWO: 512*1024, sWS: W_SIZE, sOUT: 0x200000, sWMOD: 512*6144,
                 sC: 1024, sWR: 1024, sGATE: 512*3584, sUP: 512*3584, sDOWN: 1792*1024}
        for b, n in sizes.items():
            e(f"s_mov_b32 s{b+2}, {hex(n)}\ns_mov_b32 s{b+3}, 0x20000")
        e(f"""v_and_b32 v1, 63, v0
        v_lshrrev_b32 v2, 6, v0
        s_and_b32 s{sXC}, s2, 7
        s_lshr_b32 s{sJ}, s2, 3
        v_readfirstlane_b32 s{sWAVE}, v2
        s_mov_b32 s{sMASKHI}, 0xffff0000
        s_mov_b32 s{sSPIN}, 400000
        s_mov_b32 s{sVM}, 0x0000ffff
        s_mov_b32 s{sVM+1}, 0x0000ffff
        s_mov_b32 s{sLO}, -1
        s_mov_b32 s{sLO+1}, 0
        s_mov_b32 s{sC8K}, 8192
        s_mov_b32 s{sC16K}, 16384
        s_mov_b32 s{sC24K}, 24576
        s_lshr_b32 s{sT[0]}, s{sJ}, 2
        s_lshl_b32 s{sT[1]}, s{sT[0]}, 3
        s_add_u32 s{sT[1]}, s{sT[1]}, s{sXC}
        s_lshl_b32 s{sT[1]}, s{sT[1]}, 2
        s_and_b32 s{sT[2]}, s{sJ}, 3
        s_add_u32 s{sSLICE}, s{sT[1]}, s{sT[2]}
        s_and_b32 s{sT[3]}, s{sXC}, 3
        s_lshl_b32 s{sT[3]}, s{sT[3]}, 2
        s_add_u32 s{sTB}, s{sT[3]}, s{sT[2]}
        s_lshr_b32 s{sT[3]}, s{sXC}, 2
        s_lshl_b32 s{sT[3]}, s{sT[3]}, 3
        s_add_u32 s{sHP}, s{sT[3]}, s{sT[0]}
        s_lshl_b32 s{sT[3]}, s{sXC}, 2
        s_add_u32 s{sHEAD}, s{sT[3]}, s{sT[2]}
        s_mov_b32 s{sQB}, s{sT[0]}
        s_lshl_b32 s{sT[3]}, s{sXC}, 3
        s_add_u32 s{sTILE}, s{sT[3]}, s{sT[0]}
        s_mov_b32 s{sCS}, s{sT[2]}
        s_lshr_b32 s{sKH}, s{sWAVE}, 2
        s_and_b32 s{sI}, s{sWAVE}, 3
        s_waitcnt lgkmcnt(0)
        s_load_dword s{sTAG}, s[{sWS}:{sWS+1}], {W_EPOCH}
        s_load_dwordx2 s[{sWO}:{sWO+1}], s[0:1], 16
        s_load_dwordx2 s[{sWR}:{sWR+1}], s[0:1], 32
        s_load_dwordx2 s[{sGATE}:{sGATE+1}], s[0:1], 40
        s_load_dwordx2 s[{sUP}:{sUP+1}], s[0:1], 48
        s_load_dwordx2 s[{sDOWN}:{sDOWN+1}], s[0:1], 56
        s_load_dwordx2 s[{sOUT}:{sOUT+1}], s[0:1], 80""")

    def p1_issue(self):
        e = self.e
        e(f"""s_cmp_ge_u32 s{sJ}, 24
        s_cbranch_scc1 L_p1_noissue
        v_lshlrev_b32 v3, 4, v1
        buffer_load_dwordx4 v[16:19], v3, {srd(sC)}, 0 offen
        v_lshrrev_b32 v2, 1, v1
        v_mul_u32_u24 v2, 6144, v2
        v_and_b32 v3, 1, v1
        v_lshl_add_u32 v2, v3, 4, v2
        s_lshl_b32 s{sT[0]}, s{sSLICE}, 5
        v_add_u32 v2, s{sT[0]}, v2""")
        for q in range(16):
            e(f"""s_mov_b32 m0, {L_P1W + q*1024}
            s_mov_b32 s{sT[1]}, {q*32*6144}
            buffer_load_dwordx4 v2, {srd(sWMOD)}, s{sT[1]} offen lds""")
        e("L_p1_noissue:")

    def x_issue(self):
        e = self.e
        e(f"""s_lshl_b32 s{sT[0]}, s{sTB}, 7
        s_lshl_b32 s{sT[1]}, s{sI}, 5
        s_add_u32 s{sT[0]}, s{sT[0]}, s{sT[1]}
        v_lshrrev_b32 v4, 3, v1
        v_add_u32 v4, s{sT[0]}, v4
        v_lshlrev_b32 v4, 10, v4
        v_and_b32 v5, 7, v1
        v_lshl_add_u32 v4, v5, 4, v4
        s_lshl_b32 s{sT[1]}, s{sKH}, 9
        v_add_u32 v4, s{sT[1]}, v4""")
        so = ['0', f's{sC8K}', f's{sC16K}', f's{sC24K}']
        for b in range(4):
            for q in range(4):
                d = 64 + b*16 + q*4
                e(f"buffer_load_dwordx4 v[{d}:{d+3}], v4, {srd(sX)}, {so[q]} offen offset:{b*128}")

    def w_issue(self):
        e = self.e
        top = self.lab('wdma')
        e(f"""v_lshrrev_b32 v5, 2, v1
        v_mul_u32_u24 v5, 3072, v5
        v_and_b32 v6, 3, v1
        v_lshl_add_u32 v5, v6, 4, v5
        s_lshl_b32 s{sT[0]}, s{sHP}, 6
        v_add_u32 v5, s{sT[0]}, v5
        s_sub_u32 s{sT[0]}, s{sWAVE}, 1
        s_mul_i32 s{sT[0]}, s{sT[0]}, 14
        s_add_u32 s{sT[1]}, s{sT[0]}, 14
        {top}:
        s_min_u32 s{sT[5]}, s{sT[0]}, 95
        s_and_b32 s{sT[2]}, s{sT[5]}, 15
        s_mul_i32 s{sT[2]}, s{sT[2]}, {16*3072}
        s_lshr_b32 s{sT[3]}, s{sT[5]}, 4
        s_cmp_ge_u32 s{sT[3]}, 3
        s_cselect_b32 s{sT[4]}, {256*3072 - 3*1024}, 0
        s_lshl_b32 s{sT[3]}, s{sT[3]}, 10
        s_add_u32 s{sT[2]}, s{sT[2]}, s{sT[3]}
        s_add_u32 s{sT[2]}, s{sT[2]}, s{sT[4]}
        s_lshl_b32 m0, s{sT[5]}, 10
        s_add_u32 s{sT[0]}, s{sT[0]}, 1
        buffer_load_dwordx4 v5, {srd(sWQKV)}, s{sT[2]} offen lds
        s_cmp_lt_u32 s{sT[0]}, s{sT[1]}
        s_cbranch_scc1 {top}""")

    def gemv16(self, steps, vWA, vVA, woff, voff, D, B0, A0, first=True):
        e = self.e
        for i in range(0, len(steps), 8):
            batch = steps[i:i+8]
            for n, s in enumerate(batch):
                e(f"""ds_read_b64_tr_b16 v[{B0+4*n}:{B0+4*n+1}], v{vWA} offset:{woff + s*1024}
                ds_read_b64_tr_b16 v[{B0+4*n+2}:{B0+4*n+3}], v{vWA} offset:{woff + s*1024 + 512}
                ds_read_b64 v[{A0+4*n}:{A0+4*n+1}], v{vVA} offset:{voff + s*64}
                ds_read_b64 v[{A0+4*n+2}:{A0+4*n+3}], v{vVA} offset:{voff + s*64 + 32}""")
            e("s_waitcnt lgkmcnt(0)")
            for n, s in enumerate(batch):
                c = '0' if first else f"v[{D}:{D+3}]"
                e(f"v_mfma_f32_16x16x32_bf16 v[{D}:{D+3}], v[{A0+4*n}:{A0+4*n+3}], v[{B0+4*n}:{B0+4*n+3}], {c}")
                first = False

    def tag_finish(self):
        self.e(f"""s_waitcnt lgkmcnt(0)
        s_mul_i32 s{sTAG}, s{sTAG}, 1664525
        s_add_u32 s{sTAG}, s{sTAG}, 1013904223""")

    def p1_compute(self):
        e = self.e
        e(f"""s_cmp_ge_u32 s{sJ}, 24
        s_cbranch_scc1 L_p1_done
        s_cmp_lg_u32 s{sWAVE}, 0
        s_cbranch_scc1 L_p1_done
        s_waitcnt vmcnt(32)""")
        for p in range(4):
            e(f"""v_lshlrev_b32 v24, 16, v{16+p}
            v_and_b32 v25, s{sMASKHI}, v{16+p}
            v_mul_f32 v26, 0xbfb8aa3b, v24
            v_mul_f32 v27, 0xbfb8aa3b, v25
            v_exp_f32 v26, v26
            v_exp_f32 v27, v27
            v_add_f32 v26, 1.0, v26
            v_add_f32 v27, 1.0, v27
            v_rcp_f32 v26, v26
            v_rcp_f32 v27, v27
            v_mul_f32 v24, v24, v26
            v_mul_f32 v25, v25, v27
            v_cvt_pk_bf16_f32 v{20+p}, v24, v25""")
        e(f"""v_lshlrev_b32 v3, 4, v1
        v_add_u32 v3, {L_SVEC}, v3
        ds_write_b128 v3, v[20:23]
        v_lshlrev_b32 v6, 3, v1
        v_add_u32 v6, {L_P1W}, v6
        v_lshrrev_b32 v7, 4, v1
        v_lshlrev_b32 v7, 3, v7
        v_add_u32 v7, {L_SVEC}, v7
        s_waitcnt vmcnt(16) lgkmcnt(0)""")
        self.gemv16(list(range(16)), 6, 7, 0, 0, 28, 128, 160)
        self.bf16r(24, 28)
        e(f"""s_sub_u32 s{sT[0]}, s{sSLICE}, 32
        s_cmp_lt_u32 s{sT[0]}, 32
        s_cbranch_scc1 L_p1_plus1
        s_sub_u32 s{sT[0]}, s{sSLICE}, 128
        s_cmp_lt_u32 s{sT[0]}, 32
        s_cbranch_scc0 L_p1_noplus1
        L_p1_plus1:
        v_add_f32 v24, 1.0, v24""")
        self.bf16r(24, 24)
        e(f"""L_p1_noplus1:
        v_mov_b32 v25, s{sTAG}
        s_lshl_b32 s{sT[1]}, s{sSLICE}, 7
        s_add_u32 s{sT[1]}, s{sT[1]}, {W_MODG}
        v_lshlrev_b32 v3, 3, v1
        v_add_u32 v3, s{sT[1]}, v3
        s_mov_b64 exec, 0xffff
        buffer_store_dwordx2 v[24:25], v3, {srd(sWS)}, 0 offen sc1
        s_mov_b64 exec, -1
        L_p1_done:""")

    def x_transpose_stats(self):
        e = self.e
        e(f"""s_lshl_b32 s{sT[0]}, s{sWAVE}, 12
        s_add_u32 s{sT[0]}, s{sT[0]}, {L_XST}
        v_lshrrev_b32 v10, 3, v1
        v_and_b32 v11, 7, v1
        v_lshrrev_b32 v12, 1, v10
        v_xor_b32 v11, v11, v12
        v_lshlrev_b32 v4, 7, v10
        v_lshl_add_u32 v4, v11, 4, v4
        v_add_u32 v4, s{sT[0]}, v4
        v_xor_b32 v5, 64, v4
        v_and_b32 v10, 31, v1
        v_lshrrev_b32 v11, 5, v1
        v_bfe_u32 v12, v10, 1, 3
        v_xor_b32 v11, v11, v12
        v_lshlrev_b32 v10, 7, v10
        v_add_u32 v10, s{sT[0]}, v10
        v_lshl_add_u32 v6, v11, 4, v10
        v_xor_b32 v7, 32, v6
        v_xor_b32 v8, 64, v6
        v_xor_b32 v9, 96, v6
        v_mov_b32 v12, 0x3f803f80
        v_mov_b32 v16, 0
        v_mov_b32 v17, 0
        v_mov_b32 v18, 0
        v_mov_b32 v19, 0""")
        for b in range(4):
            l0, l1 = self.lab('xw'), self.lab('xw')
            e(f"""s_cmp_eq_u32 s{sWAVE}, 0
            s_cbranch_scc1 {l0}
            s_waitcnt vmcnt({14 + 12 - 4*b})
            s_branch {l1}
            {l0}:
            s_waitcnt vmcnt({12 - 4*b})
            {l1}:""")
            for q in range(4):
                d = 64 + b*16 + q*4
                e(f"ds_write_b128 v{4 + (q & 1)}, v[{d}:{d+3}] offset:{q*1024}")
            for s in range(4):
                d = 64 + b*16 + s*4
                e(f"ds_read_b128 v[{d}:{d+3}], v{6+s}")
            if b > 0:
                self.dots(64 + (b-1)*16, 8)
        e("s_waitcnt lgkmcnt(0)")
        self.dots(64 + 48, None)
        e(f"""v_add_f32 v16, v16, v17
        v_add_f32 v18, v18, v19
        v_mov_b32 v17, v16
        v_mov_b32 v19, v18
        v_permlane32_swap_b32 v16, v17
        v_permlane32_swap_b32 v18, v19
        v_add_f32 v16, v16, v17
        v_add_f32 v17, v18, v19
        s_lshl_b32 s{sT[0]}, s{sI}, 9
        s_lshl_b32 s{sT[1]}, s{sKH}, 8
        s_add_u32 s{sT[0]}, s{sT[0]}, s{sT[1]}
        s_add_u32 s{sT[0]}, s{sT[0]}, {L_STAT}
        v_and_b32 v10, 31, v1
        v_lshl_add_u32 v10, v10, 3, s{sT[0]}
        ds_write_b64 v10, v[16:17]""")

    def dots(self, base, wait):
        if wait is not None:
            self.e(f"s_waitcnt lgkmcnt({wait})")
        for r in range(16):
            a = 16 + (r & 1); b = 18 + (r & 1)
            self.e(f"v_dot2_f32_bf16 v{a}, v{base+r}, v12, v{a}\nv_dot2_f32_bf16 v{b}, v{base+r}, v{base+r}, v{b}")

    def mod_poll(self):
        e = self.e
        top, done = self.lab('mp'), self.lab('mpd')
        e(f"""v_lshlrev_b32 v10, 3, v0
        v_add_u32 v10, {W_MODG}, v10
        {top}:
        buffer_load_dwordx2 v[20:21], v10, {srd(sWS)}, 0 offen sc1
        s_mov_b32 s{sT[0]}, 4096
        buffer_load_dwordx2 v[22:23], v10, {srd(sWS)}, s{sT[0]} offen sc1
        s_waitcnt vmcnt(0)
        v_cmp_eq_u32 vcc, s{sTAG}, v21
        v_cmp_eq_u32 s[{sT[2]}:{sT[3]}], s{sTAG}, v23
        s_and_b64 vcc, vcc, s[{sT[2]}:{sT[3]}]
        s_cmp_eq_u64 vcc, exec
        s_cbranch_scc1 {done}""")
        self.spin_guard(top, done)
        e(f"""{done}:
        v_lshlrev_b32 v10, 2, v0
        v_add_u32 v10, {L_MV}, v10
        ds_write_b32 v10, v22
        ds_write_b32 v10, v20 offset:2048""")

    def ln_finalize(self, vS1, vS2, vR, n=512):
        e = self.e
        e(f"""v_mul_f32 v10, {hex(f32bits(1.0/n))}, v{vS1}
        v_mul_f32 v11, {hex(f32bits(1.0/n))}, v{vS2}
        v_fma_f32 v11, -v10, v10, v11
        v_max_f32 v11, 0, v11""")
        self.bf16r(10, 10)
        self.bf16r(11, 11)
        e("v_add_f32 v11, 0x3727c5ac, v11")
        self.bf16r(11, 11)
        e("v_sqrt_f32 v11, v11")
        self.bf16r(11, 11)
        e(f"""v_rcp_f32 v{vR}, v11
        s_nop 0
        v_mul_f32 v{vR+1}, v10, v{vR}
        v_sub_f32 v{vR+1}, 0, v{vR+1}""")

    def p2_main(self):
        e = self.e
        MV, TT, HF, RS = 152, 168, 176, 184
        WF = 128
        e(f"""s_waitcnt vmcnt(0) lgkmcnt(0)
        s_barrier""")
        self.stamp('p2_start')
        e(f"""s_lshl_b32 s{sT[0]}, s{sI}, 9
        s_add_u32 s{sT[0]}, s{sT[0]}, {L_STAT}
        v_and_b32 v10, 31, v1
        v_lshl_add_u32 v10, v10, 3, s{sT[0]}
        ds_read_b64 v[16:17], v10
        ds_read_b64 v[18:19], v10 offset:256
        s_lshl_b32 s{sT[0]}, s{sKH}, 10
        s_add_u32 s{sT[0]}, s{sT[0]}, {L_MV}
        v_lshrrev_b32 v11, 5, v1
        v_lshl_add_u32 v6, v11, 5, s{sT[0]}
        s_mul_i32 s{sT[0]}, s{sKH}, 49152
        v_lshlrev_b32 v7, 9, v11
        v_bfe_u32 v12, v1, 2, 2
        v_lshl_add_u32 v7, v12, 6, v7
        v_bfe_u32 v12, v1, 4, 1
        v_lshl_add_u32 v7, v12, 5, v7
        v_and_b32 v12, 3, v1
        v_lshl_add_u32 v7, v12, 3, v7
        v_add_u32 v7, s{sT[0]}, v7""")
        def reads(s):
            w = WF + 12 * (s & 1)
            e(f"""ds_read_b128 v[{MV}:{MV+3}], v6 offset:{s*64}
            ds_read_b128 v[{MV+4}:{MV+7}], v6 offset:{s*64+16}
            ds_read_b128 v[{MV+8}:{MV+11}], v6 offset:{2048+s*64}
            ds_read_b128 v[{MV+12}:{MV+15}], v6 offset:{2048+s*64+16}""")
            for part in range(3):
                e(f"""ds_read_b64_tr_b16 v[{w+4*part}:{w+4*part+1}], v7 offset:{part*16384 + s*1024}
                ds_read_b64_tr_b16 v[{w+4*part+2}:{w+4*part+3}], v7 offset:{part*16384 + s*1024 + 256}""")
        reads(0)
        e("s_waitcnt lgkmcnt(10)")
        e("v_add_f32 v16, v16, v18\nv_add_f32 v17, v17, v19")
        self.ln_finalize(16, 17, RS)
        for s in range(16):
            w = WF + 12 * (s & 1)
            h = HF + 4 * (s & 1)
            e("s_waitcnt lgkmcnt(0)")
            for p in range(4):
                x = 64 + 4*s + p
                t = TT + 2*p
                e(f"""v_lshlrev_b32 v{t}, 16, v{x}
                v_and_b32 v{t+1}, s{sMASKHI}, v{x}""")
            for p in range(4):
                t = TT + 2*p
                e(f"v_pk_fma_f32 v[{t}:{t+1}], v[{t}:{t+1}], v[{RS}:{RS+1}], v[{RS}:{RS+1}] op_sel:[0,0,1] op_sel_hi:[1,0,1]")
            for p in range(4):
                t = TT + 2*p
                e(f"v_pk_fma_f32 v[{t}:{t+1}], v[{t}:{t+1}], v[{MV+2*p}:{MV+2*p+1}], v[{MV+8+2*p}:{MV+8+2*p+1}]")
            for p in range(4):
                t = TT + 2*p
                e(f"v_cvt_pk_bf16_f32 v{h+p}, v{t}, v{t+1}")
            if s < 15:
                reads(s + 1)
            c = lambda b: '0' if s == 0 else f"v[{b}:{b+15}]"
            e(f"""v_mfma_f32_32x32x16_bf16 v[16:31], v[{w}:{w+3}], v[{h}:{h+3}], {c(16)}
            v_mfma_f32_32x32x16_bf16 v[32:47], v[{w+4}:{w+7}], v[{h}:{h+3}], {c(32)}
            v_mfma_f32_32x32x16_bf16 v[48:63], v[{h}:{h+3}], v[{w+8}:{w+11}], {c(48)}""")
        self.stamp('p2_mfma_done')

    def p2_epilogue(self):
        e = self.e
        lk1, lj1, lj2 = self.lab('p2k1'), self.lab('p2j'), self.lab('p2j')
        e(f"""s_nop 7
        s_mul_i32 s{sT[0]}, s{sI}, 12288
        s_add_u32 s{sT[0]}, s{sT[0]}, {L_RED}
        v_lshl_add_u32 v10, v1, 4, s{sT[0]}
        s_cmp_eq_u32 s{sKH}, 1
        s_cbranch_scc1 {lk1}""")
        for g in range(4):
            e(f"ds_write_b128 v10, v[{48+4*g}:{51+4*g}] offset:{(8+g)*1024}")
        e(f"s_branch {lj1}\n{lk1}:")
        for g in range(8):
            e(f"ds_write_b128 v10, v[{16+4*g}:{19+4*g}] offset:{g*1024}")
        e(f"""{lj1}:
        s_waitcnt lgkmcnt(0)
        s_barrier
        s_lshl_b32 s{sT[1]}, s{sTB}, 2
        s_add_u32 s{sT[1]}, s{sT[1]}, s{sI}
        s_lshl_b32 s{sT[1]}, s{sT[1]}, 10
        s_lshl_b32 s{sT[2]}, s{sHP}, 17
        s_add_u32 s{sT[1]}, s{sT[1]}, s{sT[2]}
        s_cmp_eq_u32 s{sKH}, 1
        s_cbranch_scc1 {lk1}b""")
        for g in range(8):
            e(f"ds_read_b128 v[{128+4*g}:{131+4*g}], v10 offset:{g*1024}")
        e(f"""v_lshlrev_b32 v11, 4, v1
        v_add_u32 v11, s{sT[1]}, v11
        s_mov_b32 s{sT[3]}, {W_QF}
        s_mov_b32 s{sT[4]}, {W_QF + 65536}
        s_mov_b32 s{sT[5]}, {W_KF}
        s_mov_b32 s{sT[6]}, {W_KF + 65536}
        s_waitcnt lgkmcnt(0)
        s_barrier""")
        for r in range(32):
            e(f"v_add_f32 v{16+r}, v{16+r}, v{128+r}")
        for r in range(16):
            e(f"v_mul_f32 v{16+r}, {hex(QSCALE)}, v{16+r}")
        for p in range(16):
            e(f"v_cvt_pk_bf16_f32 v{128+p}, v{16+2*p}, v{17+2*p}")
        for n in range(4):
            e(f"buffer_store_dwordx4 v[{128+4*n}:{131+4*n}], v11, {srd(sWS)}, s{sT[3+n]} offen sc1")
        e(f"s_branch {lj2}\n{lk1}b:")
        for g in range(4):
            e(f"ds_read_b128 v[{128+4*g}:{131+4*g}], v10 offset:{(8+g)*1024}")
        e(f"""v_bfe_u32 v11, v1, 4, 1
        v_lshlrev_b32 v11, 16, v11
        v_lshrrev_b32 v12, 5, v1
        v_lshl_add_u32 v11, v12, 8, v11
        v_and_b32 v12, 15, v1
        v_lshl_add_u32 v11, v12, 4, v11
        v_add_u32 v11, s{sT[1]}, v11
        s_mov_b32 s{sT[3]}, {W_VF}
        s_waitcnt lgkmcnt(0)
        s_barrier""")
        for r in range(16):
            e(f"v_add_f32 v{48+r}, v{48+r}, v{128+r}")
        for p in range(8):
            e(f"v_cvt_pk_bf16_f32 v{128+p}, v{48+2*p}, v{49+2*p}")
        e(f"""buffer_store_dwordx4 v[128:131], v11, {srd(sWS)}, s{sT[3]} offen sc1
        buffer_store_dwordx4 v[132:135], v11, {srd(sWS)}, s{sT[3]} offen offset:512 sc1
        {lj2}:""")

    def drain_barrier(self, n=0):
        self.e(f"s_waitcnt vmcnt({n})\ns_barrier")

    def flag_store(self, base):
        self.e(f"""s_lshl_b32 s{sT[0]}, s2, 7
        s_add_u32 s{sT[0]}, s{sT[0]}, {base}
        v_mov_b32 v10, s{sT[0]}
        v_mov_b32 v11, s{sTAG}
        v_cmp_eq_u32 vcc, 0, v0
        s_and_saveexec_b64 s[{sEX}:{sEX+1}], vcc
        buffer_store_dword v11, v10, {srd(sWS)}, 0 offen sc1
        s_mov_b64 exec, s[{sEX}:{sEX+1}]""")

    def poll_flags(self, vaddr, nlanes_mask):
        e = self.e
        top, done = self.lab('pf'), self.lab('pfd')
        e(f"""s_cmp_lg_u32 s{sWAVE}, 0
        s_cbranch_scc1 {done}
        s_mov_b64 exec, {nlanes_mask}
        {top}:
        buffer_load_dword v11, v{vaddr}, {srd(sWS)}, 0 offen sc1
        s_waitcnt vmcnt(0)
        v_cmp_eq_u32 vcc, s{sTAG}, v11
        s_cmp_eq_u64 vcc, exec
        s_cbranch_scc1 {done}x""")
        self.spin_guard(top, f"{done}x")
        e(f"""{done}x:
        s_mov_b64 exec, -1
        {done}:
        s_barrier""")

    def wo_issue(self):
        e = self.e
        e(f"""v_lshrrev_b32 v5, 2, v1
        v_lshlrev_b32 v5, 10, v5
        v_and_b32 v6, 3, v1
        v_lshl_add_u32 v5, v6, 4, v5
        s_lshl_b32 s{sT[0]}, s{sCS}, 8
        s_lshl_b32 s{sT[1]}, s{sI}, 6
        s_add_u32 s{sT[0]}, s{sT[0]}, s{sT[1]}
        s_lshl_b32 s{sT[1]}, s{sKH}, 18
        s_add_u32 s{sT[0]}, s{sT[0]}, s{sT[1]}
        v_add_u32 v5, s{sT[0]}, v5
        s_lshl_b32 s{sT[1]}, s{sWAVE}, 14
        s_mov_b32 s{sT[2]}, 0""")
        for n in range(16):
            e(f"""s_mov_b32 m0, s{sT[1]}
            s_add_u32 s{sT[1]}, s{sT[1]}, 1024
            buffer_load_dwordx4 v5, {srd(sWO)}, s{sT[2]} offen lds
            s_add_u32 s{sT[2]}, s{sT[2]}, 16384""")

    def wo_frags(self):
        e = self.e
        e(f"""s_lshl_b32 s{sT[0]}, s{sWAVE}, 14
        v_lshrrev_b32 v6, 5, v1
        v_lshlrev_b32 v5, 8, v6
        v_bfe_u32 v6, v1, 2, 2
        v_lshl_add_u32 v5, v6, 6, v5
        v_and_b32 v6, 1, v1
        v_lshl_add_u32 v5, v6, 5, v5
        v_bfe_u32 v6, v1, 4, 1
        v_lshl_add_u32 v5, v6, 4, v5
        v_bfe_u32 v6, v1, 1, 1
        v_lshl_add_u32 v5, v6, 3, v5
        v_add_u32 v5, s{sT[0]}, v5
        s_waitcnt vmcnt(0)""")
        for hd in range(16):
            e(f"""ds_read_b64_tr_b16 a[{4*hd}:{4*hd+1}], v5 offset:{hd*1024}
            ds_read_b64_tr_b16 a[{4*hd+2}:{4*hd+3}], v5 offset:{hd*1024+512}""")
        e("s_waitcnt lgkmcnt(0)")

    def p3_prologue(self):
        e = self.e
        e(f"""v_and_b32 v10, 15, v1
        v_lshrrev_b32 v12, 2, v10
        v_and_b32 v10, 3, v10
        s_lshr_b32 s{sT[0]}, s{sHEAD}, 1
        s_and_b32 s{sT[1]}, s{sT[0]}, 7
        s_lshl_b32 s{sT[1]}, s{sT[1]}, 2
        v_add_u32 v10, s{sT[1]}, v10
        v_lshlrev_b32 v10, 3, v10
        s_lshr_b32 s{sT[0]}, s{sT[0]}, 3
        s_lshl_b32 s{sT[0]}, s{sT[0]}, 2
        v_add_u32 v10, s{sT[0]}, v10
        v_add_u32 v10, v10, v12
        v_lshlrev_b32 v10, 7, v10
        v_add_u32 v10, {W_FLAG2}, v10""")
        self.poll_flags(10, 0xffff)
        self.stamp('qkv_flags')
        e(f"""s_lshl_b32 s{sT[0]}, s{sHEAD}, 16
        v_lshlrev_b32 v5, 4, v1
        v_add_u32 v5, s{sT[0]}, v5
        s_lshl_b32 s{sT[1]}, s{sQB}, 3
        s_add_u32 s{sT[1]}, s{sT[1]}, s{sWAVE}
        s_lshl_b32 s{sT[1]}, s{sT[1]}, 10
        s_add_u32 s{sT[1]}, s{sT[1]}, {W_QF}
        buffer_load_dwordx4 v[{vQ}:{vQ+3}], v5, {srd(sWS)}, s{sT[1]} offen sc1
        s_lshl_b32 s{sT[2]}, s{sWAVE}, 10
        s_add_u32 s{sT[3]}, s{sT[2]}, {W_KF}
        s_add_u32 s{sT[4]}, s{sT[2]}, {W_VF}
        s_add_u32 s{sT[5]}, s{sT[2]}, 65536""")
        for n in range(8):
            e(f"""s_mov_b32 m0, s{sT[2]}
            s_add_u32 s{sT[2]}, s{sT[2]}, 8192
            buffer_load_dwordx4 v5, {srd(sWS)}, s{sT[3]} offen sc1 lds
            s_mov_b32 m0, s{sT[5]}
            s_add_u32 s{sT[5]}, s{sT[5]}, 8192
            buffer_load_dwordx4 v5, {srd(sWS)}, s{sT[4]} offen sc1 lds
            s_add_u32 s{sT[3]}, s{sT[3]}, 8192
            s_add_u32 s{sT[4]}, s{sT[4]}, 8192""")
        e(f"""v_lshlrev_b32 v{vAK}, 4, v1
        v_and_b32 v{vAV}, 15, v1
        v_lshlrev_b32 v{vAV}, 4, v{vAV}
        v_lshrrev_b32 v6, 5, v1
        v_lshl_add_u32 v{vAV}, v6, 8, v{vAV}
        v_add_u32 v{vAV}, 65536, v{vAV}""")
        for r in range(16): e(f"v_mov_b32 v{vO+r}, 0")
        for r in range(8): e(f"v_mov_b32 v{vPB+r}, 0")
        for r in range(16): e(f"v_mov_b32 v{vVA0+r}, 0x3f803f80")

    def mf(self, D, A, B, C):
        c = f"v[{C}:{C+15}]" if C is not None else "0"
        return f"v_mfma_f32_32x32x16_bf16 v[{D}:{D+15}], v[{A}:{A+3}], v[{B}:{B+3}], {c}\n"

    def exp_block(self, S, P, slots):
        s = ""
        for i in range(16):
            s += slots.get(i, "")
            s += f"v_exp_f32 v{S+i}, v{S+i}\n"
            if i >= 2 and i % 2 == 0:
                j = i // 2 - 1
                s += f"v_cvt_pk_bf16_f32 v{P+j}, v{S+2*j}, v{S+2*j+1}\n"
        s += f"v_cvt_pk_bf16_f32 v{P+7}, v{S+14}, v{S+15}\n"
        self.e(s)

    def p3_loop(self):
        e = self.e
        rd = lambda d, a, off: f"ds_read_b128 v[{d}:{d+3}], v{a} offset:{off}\n"
        EXM = f"s_mov_b64 exec, s[{sVM}:{sVM+1}]\n"; EXF = "s_mov_b64 exec, -1\n"
        sU, sNB = sT[8], sT[9]
        e(f"""s_waitcnt vmcnt(14)
        s_barrier""")
        self.stamp('kv_first')
        e(rd(vK0, vAK, 0) + rd(vK1, vAK, 1024) + EXM + rd(vVA0, vAV, 0) + rd(vVA1, vAV, 512) + EXF)
        e("s_waitcnt lgkmcnt(3)")
        e(self.mf(vSA, vK0, vQ, None))
        e(rd(vK0, vAK, 2048))
        e(f"""s_mov_b32 s{sU}, 0
        s_mov_b32 s{sNB}, 2
        s_nop 7""")
        top, stub, back = self.lab('att'), self.lab('attw'), self.lab('attb')
        e(f"""{top}:
        s_cmp_eq_u32 s{sU}, s{sNB}
        s_cbranch_scc1 {stub}
        {back}:""")
        for i in range(2):
            off = i * 2048
            self.exp_block(vSA, vPA, {
                0: "s_waitcnt lgkmcnt(4)\n" + self.mf(vO, vVB0, vPB, vO), 4: self.mf(vO, vVB1, vPB+4, vO),
                8: "s_waitcnt lgkmcnt(3)\n" + self.mf(vSB, vK1, vQ, None),
                10: EXM + rd(vVB0, vAV, off + 1024) + rd(vVB1, vAV, off + 1536) + EXF + rd(vK1, vAK, off + 3072)})
            self.exp_block(vSB, vPB, {
                0: "s_waitcnt lgkmcnt(4)\n" + self.mf(vO, vVA0, vPA, vO), 4: self.mf(vO, vVA1, vPA+4, vO),
                8: "s_waitcnt lgkmcnt(3)\n" + self.mf(vSA, vK0, vQ, None),
                10: EXM + rd(vVA0, vAV, off + 2048) + rd(vVA1, vAV, off + 2560) + EXF + rd(vK0, vAK, off + 4096)})
        e(f"""v_add_u32 v{vAK}, 4096, v{vAK}
        v_add_u32 v{vAV}, 4096, v{vAV}
        s_add_u32 s{sU}, s{sU}, 2
        s_cmp_lt_u32 s{sU}, 32
        s_cbranch_scc1 {top}
        s_branch {top}_end
        {stub}:
        s_cmp_eq_u32 s{sU}, 2
        s_cbranch_scc0 {stub}_b
        s_waitcnt vmcnt(12)
        s_mov_b32 s{sNB}, 6
        s_barrier
        s_branch {back}
        {stub}_b:
        s_cmp_eq_u32 s{sU}, 6
        s_cbranch_scc0 {stub}_c
        s_waitcnt vmcnt(8)
        s_mov_b32 s{sNB}, 14
        s_barrier
        s_branch {back}
        {stub}_c:
        s_waitcnt vmcnt(0)
        s_mov_b32 s{sNB}, 99
        s_barrier
        s_branch {back}
        {top}_end:
        s_waitcnt lgkmcnt(0)""")
        e(self.mf(vO, vVB0, vPB, vO) + self.mf(vO, vVB1, vPB+4, vO))
        self.stamp('att_done')

    def p3_epilogue(self):
        e = self.e
        ok = self.lab('att_ok')
        e(f"""s_nop 7
        s_nop 3
        v_cmp_le_f32 vcc, 0x21800000, v{vO+8}
        v_mov_b32 v10, 0x71800000
        v_cmp_le_f32 s[{sT[0]}:{sT[1]}], v{vO+8}, v10
        s_and_b64 vcc, vcc, s[{sT[0]}:{sT[1]}]
        v_mov_b32 v10, 0x207""")
        for r in range(8):
            e(f"""v_cmp_class_f32 s[{sT[0]}:{sT[1]}], v{vO+r}, v10
            s_andn2_b64 vcc, vcc, s[{sT[0]}:{sT[1]}]""")
        e(f"""s_cmp_eq_u64 vcc, exec
        s_cbranch_scc1 {ok}""")
        self.p3_fallback()
        e(f"""{ok}:
        v_rcp_f32 v10, v{vO+8}
        s_nop 0""")
        for r in range(8):
            e(f"v_mul_f32 v{vO+r}, v{vO+r}, v10")
        for p in range(4):
            e(f"v_cvt_pk_bf16_f32 v{vPA+p}, v{vO+2*p}, v{vO+2*p+1}")
        e(f"""s_lshl_b32 s{sT[0]}, s{sQB}, 3
        s_add_u32 s{sT[0]}, s{sT[0]}, s{sWAVE}
        s_lshl_b32 s{sT[0]}, s{sT[0]}, 15
        s_lshl_b32 s{sT[1]}, s{sHEAD}, 10
        s_add_u32 s{sT[0]}, s{sT[0]}, s{sT[1]}
        s_add_u32 s{sT[0]}, s{sT[0]}, {W_OF}
        v_lshlrev_b32 v10, 4, v1
        buffer_store_dwordx4 v[{vPA}:{vPA+3}], v10, {srd(sWS)}, s{sT[0]} offen sc1""")

    def p3_fallback(self):
        e = self.e
        top = self.lab('fb')
        sU = sT[8]
        vM, vT0, vT1 = 10, 11, 12
        rd = lambda d, a, off: f"ds_read_b128 v[{d}:{d+3}], v{a} offset:{off}\n"
        e(f"""v_lshlrev_b32 v{vAK}, 4, v1
        v_and_b32 v{vAV}, 15, v1
        v_lshlrev_b32 v{vAV}, 4, v{vAV}
        v_lshrrev_b32 v6, 5, v1
        v_lshl_add_u32 v{vAV}, v6, 8, v{vAV}
        v_add_u32 v{vAV}, 65536, v{vAV}
        v_mov_b32 v{vM}, 0xff800000""")
        for r in range(16): e(f"v_mov_b32 v{vO+r}, 0")
        e(f"""s_mov_b32 s{sU}, 0
        {top}:""")
        e(rd(vK0, vAK, 0) + f"s_mov_b64 exec, s[{sVM}:{sVM+1}]\n" + rd(vVA0, vAV, 0) + rd(vVA1, vAV, 512) + "s_mov_b64 exec, -1\ns_waitcnt lgkmcnt(0)")
        e(self.mf(vSA, vK0, vQ, None))
        e("s_nop 7\ns_nop 3")
        e(f"v_max_f32 v{vT0}, v{vSA}, v{vSA+1}")
        for r in range(2, 16, 2):
            e(f"v_max3_f32 v{vT0}, v{vT0}, v{vSA+r}, v{vSA+r+1}")
        e(f"""v_mov_b32 v{vT1}, v{vT0}
        s_nop 1
        v_permlane32_swap_b32 v{vT0}, v{vT1}
        v_max3_f32 v{vT0}, v{vT0}, v{vT1}, v{vM}
        v_sub_f32 v{vT1}, v{vM}, v{vT0}
        v_exp_f32 v{vT1}, v{vT1}
        v_mov_b32 v{vM}, v{vT0}""")
        for r in range(16):
            e(f"v_sub_f32 v{vSA+r}, v{vSA+r}, v{vM}\nv_exp_f32 v{vSA+r}, v{vSA+r}\nv_mul_f32 v{vO+r}, v{vO+r}, v{vT1}")
        for p in range(8):
            e(f"v_cvt_pk_bf16_f32 v{vPA+p}, v{vSA+2*p}, v{vSA+2*p+1}")
        e("s_nop 1")
        e(self.mf(vO, vVA0, vPA, vO) + self.mf(vO, vVA1, vPA+4, vO))
        e(f"""v_add_u32 v{vAK}, 1024, v{vAK}
        v_add_u32 v{vAV}, 1024, v{vAV}
        s_add_u32 s{sU}, s{sU}, 1
        s_cmp_lt_u32 s{sU}, 64
        s_nop 7
        s_cbranch_scc1 {top}
        s_nop 7""")

    def dpp_sum64(self, v):
        for m in ('row_shr:1', 'row_shr:2', 'row_shr:4', 'row_shr:8'):
            self.e(f"v_add_f32_dpp v{v}, v{v}, v{v} {m} row_mask:0xf bank_mask:0xf bound_ctrl:0")
        self.e(f"v_add_f32_dpp v{v}, v{v}, v{v} row_bcast:15 row_mask:0xa bank_mask:0xf")
        self.e(f"v_add_f32_dpp v{v}, v{v}, v{v} row_bcast:31 row_mask:0xc bank_mask:0xf")

    def umax_rows(self, v, t, full):
        for m in (8, 4, 2, 1):
            self.e(f"v_max_u32_dpp v{v}, v{v}, v{v} row_ror:{m} row_mask:0xf bank_mask:0xf")
        self.e(f"""v_mov_b32 v{t}, v{v}
        v_permlane16_swap_b32 v{v}, v{t}
        v_max_u32 v{v}, v{v}, v{t}""")
        if full:
            self.e(f"""v_mov_b32 v{t}, v{v}
            v_permlane32_swap_b32 v{v}, v{t}
            v_max_u32 v{v}, v{v}, v{t}""")

    def tail_prefetch(self):
        e = self.e
        lgu, lmw, lvec, lvd = self.lab('gu'), self.lab('mw'), self.lab('vec'), self.lab('vecd')
        e(f"""s_lshr_b32 s{sT[0]}, s{sJ}, 3
        s_lshl_b32 s{sT[0]}, s{sT[0]}, 3
        s_add_u32 s{sT[0]}, s{sT[0]}, s{sXC}
        s_cmp_ge_u32 s{sT[0]}, 28
        s_cselect_b32 s{sROLE}, 1, 0
        s_lshl_b32 s{sT[0]}, s{sT[0]}, 3
        s_and_b32 s{sT[1]}, s{sJ}, 7
        s_add_u32 s{sFS}, s{sT[0]}, s{sT[1]}
        s_sub_u32 s{sT[0]}, s{sXC}, 4
        s_lshl_b32 s{sT[0]}, s{sT[0]}, 3
        s_add_u32 s{sT[0]}, s{sT[0]}, s{sT[1]}
        s_cmp_eq_u32 s{sROLE}, 1
        s_cselect_b32 s{sFS}, s{sT[0]}, s{sFS}
        s_mov_b32 s{sUP_}, 0
        s_mov_b32 s{sB0_}, 0""")
        e(f"""v_and_b32 v5, 31, v1
        s_lshl_b32 s{sT[0]}, s{sTILE}, 5
        v_add_u32 v5, s{sT[0]}, v5
        v_lshlrev_b32 v5, 10, v5
        v_lshrrev_b32 v6, 5, v1
        v_lshl_add_u32 v5, v6, 5, v5
        s_lshl_b32 s{sT[0]}, s{sCS}, 8
        s_lshl_b32 s{sT[1]}, s{sI}, 6
        s_add_u32 s{sT[0]}, s{sT[0]}, s{sT[1]}
        s_lshl_b32 s{sT[1]}, s{sKH}, 4
        s_add_u32 s{sT[0]}, s{sT[0]}, s{sT[1]}
        v_add_u32 v{vXO}, s{sT[0]}, v5
        buffer_load_dwordx4 v[48:51], v{vXO}, {srd(sX)}, 0 offen""")
        e(f"""s_cmp_lt_u32 s{sWAVE}, 3
        s_cbranch_scc1 {lvec}
        s_sub_u32 s{sT[0]}, s{sWAVE}, 3
        s_cmp_eq_u32 s{sROLE}, 0
        s_cbranch_scc1 {lgu}
        v_lshrrev_b32 v5, 1, v1
        v_lshlrev_b32 v5, 10, v5
        v_and_b32 v6, 1, v1
        v_lshl_add_u32 v5, v6, 4, v5
        s_lshl_b32 s{sT[1]}, s{sFS}, 5
        v_add_u32 v5, s{sT[1]}, v5
        {lmw}:
        s_lshl_b32 s{sT[1]}, s{sT[0]}, 10
        s_add_u32 m0, s{sT[1]}, {L_MW}
        s_lshl_b32 s{sT[2]}, s{sT[0]}, 15
        s_add_u32 s{sT[0]}, s{sT[0]}, 5
        buffer_load_dwordx4 v5, {srd(sDOWN)}, s{sT[2]} offen lds
        s_cmp_lt_u32 s{sT[0]}, 56
        s_cbranch_scc1 {lmw}
        s_branch {lvd}
        {lgu}:
        v_mul_u32_u24 v5, 3584, v1
        s_lshl_b32 s{sT[1]}, s{sFS}, 4
        v_add_u32 v5, s{sT[1]}, v5
        {lgu}t:
        s_lshl_b32 s{sT[1]}, s{sT[0]}, 10
        s_add_u32 m0, s{sT[1]}, {L_MW}
        s_mul_i32 s{sT[2]}, s{sT[0]}, {64*3584}
        s_nop 0
        buffer_load_dwordx4 v5, {srd(sGATE)}, s{sT[2]} offen lds
        s_add_u32 m0, s{sT[1]}, {L_MW + 8192}
        s_add_u32 s{sT[0]}, s{sT[0]}, 5
        buffer_load_dwordx4 v5, {srd(sUP)}, s{sT[2]} offen lds
        s_cmp_lt_u32 s{sT[0]}, 8
        s_cbranch_scc1 {lgu}t
        s_branch {lvd}""")
        top, done = self.lab('vp'), self.lab('vpd')
        e(f"""{lvec}:
        s_cmp_eq_u32 s{sWAVE}, 0
        s_cbranch_scc1 {lvd}
        s_sub_u32 s{sT[0]}, s{sWAVE}, 1
        s_lshl_b32 s{sT[0]}, s{sT[0]}, 6
        v_add_u32 v6, s{sT[0]}, v1
        s_lshl_b32 s{sT[1]}, s{sCS}, 7
        v_add_u32 v7, s{sT[1]}, v6
        v_lshlrev_b32 v8, 1, v7
        buffer_load_ushort v30, v8, {srd(sWR)}, 0 offen
        v_lshlrev_b32 v7, 3, v7
        v_add_u32 v7, {W_MODG + 8192}, v7
        s_mov_b32 s{sT[2]}, 4096
        s_mov_b32 s{sT[3]}, 8192
        s_mov_b32 s{sT[4]}, 12288
        {top}:
        buffer_load_dwordx2 v[20:21], v7, {srd(sWS)}, 0 offen sc1
        buffer_load_dwordx2 v[22:23], v7, {srd(sWS)}, s{sT[2]} offen sc1
        buffer_load_dwordx2 v[24:25], v7, {srd(sWS)}, s{sT[3]} offen sc1
        buffer_load_dwordx2 v[26:27], v7, {srd(sWS)}, s{sT[4]} offen sc1
        s_waitcnt vmcnt(0)
        v_cmp_eq_u32 vcc, s{sTAG}, v21
        v_cmp_eq_u32 s[{sT[6]}:{sT[7]}], s{sTAG}, v23
        s_and_b64 vcc, vcc, s[{sT[6]}:{sT[7]}]
        v_cmp_eq_u32 s[{sT[6]}:{sT[7]}], s{sTAG}, v25
        s_and_b64 vcc, vcc, s[{sT[6]}:{sT[7]}]
        v_cmp_eq_u32 s[{sT[6]}:{sT[7]}], s{sTAG}, v27
        s_and_b64 vcc, vcc, s[{sT[6]}:{sT[7]}]
        s_cmp_eq_u64 vcc, exec
        s_cbranch_scc1 {done}""")
        self.spin_guard(top, done)
        e(f"""{done}:
        v_lshlrev_b32 v30, 16, v30
        v_mul_f32 v28, v24, v30
        v_mul_f32 v29, v22, v30
        v_lshlrev_b32 v6, 2, v6
        v_add_u32 v6, {L_VEC}, v6
        ds_write_b32 v6, v20
        ds_write_b32 v6, v28 offset:512
        ds_write_b32 v6, v24 offset:1024
        ds_write_b32 v6, v22 offset:1536
        ds_write_b32 v6, v26 offset:2048""")
        self.dpp_sum64(28)
        self.dpp_sum64(29)
        e(f"""v_readlane_b32 s{sUP_}, v28, 63
        v_readlane_b32 s{sB0_}, v29, 63
        {lvd}:""")

    def p4_main(self):
        e = self.e
        e(f"""v_and_b32 v10, 3, v1
        s_lshr_b32 s{sT[0]}, s{sTILE}, 3
        s_lshl_b32 s{sT[0]}, s{sT[0]}, 2
        v_add_u32 v10, s{sT[0]}, v10
        v_lshlrev_b32 v10, 3, v10
        v_bfe_u32 v11, v1, 2, 3
        v_add_u32 v10, v10, v11
        v_lshlrev_b32 v10, 7, v10
        v_add_u32 v10, {W_FLAGO}, v10""")
        self.poll_flags(10, f's[{sLO}:{sLO+1}]')
        self.stamp('o_flags')
        e(f"""s_lshl_b32 s{sT[0]}, s{sTILE}, 15
        s_add_u32 s{sT[0]}, s{sT[0]}, {W_OF}
        s_lshl_b32 s{sT[1]}, s{sWAVE}, 12
        s_add_u32 s{sT[0]}, s{sT[0]}, s{sT[1]}
        v_lshlrev_b32 v5, 4, v1""")
        for n in range(4):
            e(f"""s_add_u32 m0, s{sT[1]}, {L_O + n*1024}
            s_nop 0
            buffer_load_dwordx4 v5, {srd(sWS)}, s{sT[0]} offen offset:{0} sc1 lds
            s_add_u32 s{sT[0]}, s{sT[0]}, 1024""")
        e(f"""s_lshl_b32 s{sT[0]}, s{sKH}, 14
        v_add_u32 v5, s{sT[0]}, v5
        s_waitcnt vmcnt(0) lgkmcnt(0)
        s_barrier""")
        self.stamp('o_landed')
        for hd in range(16):
            e(f"ds_read_b128 v[{64+4*hd}:{67+4*hd}], v5 offset:{L_O + hd*1024}")
        for hd in range(16):
            if hd % 4 == 0: e(f"s_waitcnt lgkmcnt({12 - hd})")
            c = '0' if hd == 0 else 'v[16:31]'
            e(f"v_mfma_f32_32x32x16_bf16 v[16:31], a[{4*hd}:{4*hd+3}], v[{64+4*hd}:{67+4*hd}], {c}")
        lk, lj = self.lab('x1'), self.lab('xj')
        e(f"""s_lshl_b32 s{sT[0]}, s{sI}, 12
        s_add_u32 s{sT[0]}, s{sT[0]}, {L_XCH}
        v_lshl_add_u32 v5, v1, 4, s{sT[0]}
        s_nop 7
        s_cmp_eq_u32 s{sKH}, 1
        s_cbranch_scc1 {lk}
        ds_write_b128 v5, v[24:27] offset:2048
        ds_write_b128 v5, v[28:31] offset:3072
        s_branch {lj}
        {lk}:
        ds_write_b128 v5, v[16:19]
        ds_write_b128 v5, v[20:23] offset:1024""")
        for r in range(8): e(f"v_mov_b32 v{16+r}, v{24+r}")
        e(f"""{lj}:
        s_lshl_b32 s{sT[0]}, s{sKH}, 11
        v_add_u32 v5, s{sT[0]}, v5
        s_lshl_b32 s{sT[0]}, s{sI}, 7
        s_lshl_b32 s{sT[1]}, s{sKH}, 5
        s_add_u32 s{sT[0]}, s{sT[0]}, s{sT[1]}
        s_add_u32 s{sT[0]}, s{sT[0]}, {L_VEC}
        v_lshrrev_b32 v6, 5, v1
        v_lshl_add_u32 v{vVEC}, v6, 6, s{sT[0]}
        s_waitcnt lgkmcnt(0)
        s_barrier
        ds_read_b128 v[32:35], v5
        ds_read_b128 v[36:39], v5 offset:1024
        ds_read_b128 v[64:67], v{vVEC}
        ds_read_b128 v[68:71], v{vVEC} offset:16
        ds_read_b128 v[72:75], v{vVEC} offset:512
        ds_read_b128 v[76:79], v{vVEC} offset:528
        s_waitcnt lgkmcnt(4)""")
        for r in range(8): e(f"v_add_f32 v{16+r}, v{16+r}, v{32+r}")
        self.stamp('p4_mfma')

    def round8(self, base):
        for p in range(4):
            a = base + 2*p
            self.e(f"""v_cvt_pk_bf16_f32 v{a}, v{a}, v{a+1}
            v_and_b32 v{a+1}, s{sMASKHI}, v{a}
            v_lshlrev_b32 v{a}, 16, v{a}""")

    def p4_epilogue(self):
        e = self.e
        self.round8(16)
        e("s_waitcnt lgkmcnt(0)")
        for r in range(8): e(f"v_mul_f32 v{16+r}, v{16+r}, v{64+r}")
        self.round8(16)
        for p in range(4):
            e(f"""v_lshlrev_b32 v{32+2*p}, 16, v{48+p}
            v_and_b32 v{33+2*p}, s{sMASKHI}, v{48+p}""")
        for r in range(8): e(f"v_add_f32 v{16+r}, v{16+r}, v{32+r}")
        self.round8(16)
        e("""v_mov_b32 v40, v16
        v_mul_f32 v41, v16, v16
        v_mul_f32 v42, v16, v72""")
        for r in range(1, 8):
            e(f"""v_add_f32 v40, v40, v{16+r}
            v_fmac_f32 v41, v{16+r}, v{16+r}
            v_fmac_f32 v42, v{16+r}, v{72+r}""")
        e("""v_mov_b32 v44, v40
        v_mov_b32 v45, v41
        v_mov_b32 v46, v42
        v_mov_b32 v43, 0
        v_permlane32_swap_b32 v40, v44
        v_permlane32_swap_b32 v41, v45
        v_permlane32_swap_b32 v42, v46
        v_add_f32 v40, v40, v44
        v_add_f32 v41, v41, v45
        v_add_f32 v42, v42, v46""")
        e(f"""v_writelane_b32 v43, s{sUP_}, 0
        v_writelane_b32 v43, s{sB0_}, 1
        s_lshl_b32 s{sT[0]}, s{sWAVE}, 9
        s_add_u32 s{sT[0]}, s{sT[0]}, {L_PST}
        v_and_b32 v6, 31, v1
        v_lshl_add_u32 v5, v6, 4, s{sT[0]}
        s_mov_b64 exec, s[{sLO}:{sLO+1}]
        ds_write_b128 v5, v[40:43]
        s_mov_b64 exec, -1
        s_waitcnt lgkmcnt(0)
        s_barrier""")
        lp = self.lab('sp')
        e(f"""s_cmp_ge_u32 s{sWAVE}, 2
        s_cbranch_scc1 {lp}
        v_and_b32 v5, 31, v0
        v_lshlrev_b32 v5, 4, v5
        v_lshrrev_b32 v6, 5, v0
        v_lshl_add_u32 v5, v6, 2, v5
        v_add_u32 v5, {L_PST}, v5""")
        for w in range(8): e(f"ds_read_b32 v{32+w}, v5 offset:{w*512}")
        e(f"""s_lshl_b32 s{sT[0]}, s{sTILE}, 2
        s_add_u32 s{sT[0]}, s{sT[0]}, s{sCS}
        s_lshl_b32 s{sT[0]}, s{sT[0]}, 10
        s_add_u32 s{sT[0]}, s{sT[0]}, {W_STAT}
        v_lshl_add_u32 v6, v0, 3, s{sT[0]}
        s_waitcnt lgkmcnt(0)""")
        e("""v_add_f32 v32, v32, v33
        v_add_f32 v34, v34, v35
        v_add_f32 v36, v36, v37
        v_add_f32 v38, v38, v39
        v_add_f32 v32, v32, v34
        v_add_f32 v36, v36, v38
        v_add_f32 v32, v32, v36""")
        e(f"""v_mov_b32 v33, s{sTAG}
        buffer_store_dwordx2 v[32:33], v6, {srd(sWS)}, 0 offen sc1
        {lp}:""")
        self.stamp('stat_pub')
        top, done = self.lab('sq'), self.lab('sqd')
        e(f"""s_lshl_b32 s{sT[0]}, s{sTILE}, 12
        s_add_u32 s{sT[0]}, s{sT[0]}, {W_STAT}
        v_and_b32 v5, 127, v0
        v_lshlrev_b32 v5, 3, v5
        v_lshrrev_b32 v6, 7, v0
        v_lshl_add_u32 v5, v6, 10, v5
        v_add_u32 v5, s{sT[0]}, v5
        {top}:
        buffer_load_dwordx2 v[32:33], v5, {srd(sWS)}, 0 offen sc1
        s_waitcnt vmcnt(0)
        v_cmp_eq_u32 vcc, s{sTAG}, v33
        s_cmp_eq_u64 vcc, exec
        s_cbranch_scc1 {done}""")
        self.spin_guard(top, done)
        e(f"""{done}:
        v_lshlrev_b32 v5, 2, v0
        v_add_u32 v5, {L_TOT}, v5
        ds_write_b32 v5, v32
        v_and_b32 v6, 31, v1
        v_lshlrev_b32 v6, 2, v6
        v_add_u32 v6, {L_TOT}, v6
        v_mov_b32 v7, {L_TOT}
        s_waitcnt lgkmcnt(0)
        s_barrier""")
        self.stamp('stat_seen')
        for c in range(3):
            for sl in range(4):
                e(f"ds_read_b32 v{32+4*c+sl}, v6 offset:{sl*512 + c*128}")
        for sl in range(4):
            e(f"ds_read_b64 v[{44+2*sl}:{45+2*sl}], v7 offset:{sl*512 + 384}")
        e(f"""ds_read_b128 v[64:67], v{vVEC} offset:1024
        ds_read_b128 v[68:71], v{vVEC} offset:1040
        ds_read_b128 v[72:75], v{vVEC} offset:1536
        ds_read_b128 v[76:79], v{vVEC} offset:1552
        ds_read_b128 v[80:83], v{vVEC} offset:2048
        ds_read_b128 v[84:87], v{vVEC} offset:2064
        s_waitcnt lgkmcnt(6)""")
        for c in range(3):
            b = 32 + 4*c
            e(f"v_add_f32 v{b}, v{b}, v{b+1}\nv_add_f32 v{b+2}, v{b+2}, v{b+3}\nv_add_f32 v{b}, v{b}, v{b+2}")
        e("""v_add_f32 v44, v44, v46
        v_add_f32 v45, v45, v47
        v_add_f32 v48, v48, v50
        v_add_f32 v49, v49, v51
        v_add_f32 v44, v44, v48
        v_add_f32 v45, v45, v49""")
        self.ln_finalize(32, 36, 52)
        e("""v_mov_b32 v54, v10
        v_fma_f32 v45, v53, v44, v45
        v_fma_f32 v45, v52, v40, v45""")
        self.bf16r(45, 45)
        e(f"""v_ashrrev_i32 v46, 31, v45
        v_or_b32 v46, 0x80000000, v46
        v_xor_b32 v46, v45, v46
        v_and_b32 v46, s{sMASKHI}, v46
        s_lshl_b32 s{sT[0]}, s{sTILE}, 5
        s_sub_u32 s{sT[0]}, 2047, s{sT[0]}
        v_and_b32 v47, 31, v1
        v_sub_u32 v47, s{sT[0]}, v47
        v_or_b32 v46, v46, v47
        v_mov_b32 v55, v46""")
        self.umax_rows(55, 56, False)
        e(f"v_cmp_eq_u32 s[{sCAND}:{sCAND+1}], v55, v46")
        lb = self.lab('bp')
        e(f"""s_or_b32 s{sT[0]}, s{sCS}, s{sWAVE}
        s_cmp_lg_u32 s{sT[0]}, 0
        s_cbranch_scc1 {lb}
        s_lshl_b32 s{sT[0]}, s{sTILE}, 7
        s_add_u32 s{sT[0]}, s{sT[0]}, {W_BEST}
        v_mov_b32 v5, s{sT[0]}
        v_mov_b32 v58, v55
        v_mov_b32 v59, s{sTAG}
        s_mov_b64 exec, 1
        buffer_store_dwordx2 v[58:59], v5, {srd(sWS)}, 0 offen sc1
        s_mov_b64 exec, -1
        {lb}:""")
        e("s_waitcnt lgkmcnt(0)")
        for r in range(8): e(f"v_sub_f32 v{32+r}, v{16+r}, v54")
        self.round8(32)
        for r in range(8): e(f"v_mul_f32 v{32+r}, v{32+r}, v52")
        self.round8(32)
        for r in range(8): e(f"v_mul_f32 v{32+r}, v{32+r}, v{64+r}")
        self.round8(32)
        for r in range(8): e(f"v_add_f32 v{32+r}, v{32+r}, v{72+r}")
        self.round8(32)
        for r in range(8): e(f"v_mul_f32 v{40+r}, v{32+r}, v{80+r}")
        self.round8(40)
        for r in range(8): e(f"v_add_f32 v{40+r}, v{40+r}, v{16+r}")
        for p in range(4): e(f"v_cvt_pk_bf16_f32 v{vHOLD+p}, v{40+2*p}, v{41+2*p}")
        e(f"""s_andn2_b64 exec, exec, s[{sCAND}:{sCAND+1}]
        buffer_store_dwordx4 v[{vHOLD}:{vHOLD+3}], v{vXO}, {srd(sOUT)}, 0 offen
        s_mov_b64 exec, s[{sCAND}:{sCAND+1}]""")
        for r in range(8):
            e(f"""v_lshrrev_b32 v{64+2*r}, 16, v{32+r}
            v_or_b32 v{64+2*r}, v{64+2*r}, v{16+r}
            v_mov_b32 v{65+2*r}, s{sTAG}""")
        e(f"""s_lshl_b32 s{sT[0]}, s{sTILE}, 2
        s_add_u32 s{sT[0]}, s{sT[0]}, s{sCS}
        s_lshl_b32 s{sT[0]}, s{sT[0]}, 10
        s_lshl_b32 s{sT[1]}, s{sI}, 8
        s_add_u32 s{sT[0]}, s{sT[0]}, s{sT[1]}
        s_lshl_b32 s{sT[1]}, s{sKH}, 6
        s_add_u32 s{sT[0]}, s{sT[0]}, s{sT[1]}
        s_add_u32 s{sT[0]}, s{sT[0]}, {W_ROW}
        v_lshrrev_b32 v5, 5, v1
        v_lshl_add_u32 v5, v5, 7, s{sT[0]}""")
        for n in range(4):
            e(f"buffer_store_dwordx4 v[{64+4*n}:{67+4*n}], v5, {srd(sWS)}, 0 offen offset:{16*n} sc1")
        e("s_mov_b64 exec, -1")
        self.stamp('rows_out')

    def argmax_global(self):
        e = self.e
        top, done = self.lab('bq'), self.lab('bqd')
        e(f"""s_cmp_lg_u32 s{sWAVE}, 0
        s_cbranch_scc1 {done}
        v_lshlrev_b32 v5, 7, v1
        v_add_u32 v5, {W_BEST}, v5
        {top}:
        buffer_load_dwordx2 v[32:33], v5, {srd(sWS)}, 0 offen sc1
        s_waitcnt vmcnt(0)
        v_cmp_eq_u32 vcc, s{sTAG}, v33
        s_cmp_eq_u64 vcc, exec
        s_cbranch_scc1 {done}x""")
        self.spin_guard(top, f"{done}x")
        e(f"{done}x:")
        self.umax_rows(32, 33, True)
        e(f"""v_mov_b32 v5, {L_KEY}
        ds_write_b32 v5, v32
        s_waitcnt lgkmcnt(0)
        {done}:
        s_barrier
        v_mov_b32 v5, {L_KEY}
        ds_read_b32 v32, v5
        s_waitcnt lgkmcnt(0)
        v_readfirstlane_b32 s{sKEY}, v32""")
        self.stamp('argmax')
        lw = self.lab('win')
        e(f"""s_and_b32 s{sT[0]}, s{sKEY}, 2047
        s_sub_u32 s{sIDX}, 2047, s{sT[0]}
        s_lshr_b32 s{sT[0]}, s{sIDX}, 5
        s_cmp_eq_u32 s{sT[0]}, s{sTILE}
        s_cbranch_scc1 {lw}
        s_mov_b64 exec, s[{sCAND}:{sCAND+1}]
        buffer_store_dwordx4 v[{vHOLD}:{vHOLD+3}], v{vXO}, {srd(sOUT)}, 0 offen
        s_mov_b64 exec, -1
        {lw}:""")

    def moe(self):
        e = self.e
        ldn, lfin = self.lab('dn'), 'L_fin'
        top, done = self.lab('rq'), self.lab('rqd')
        e(f"""s_lshr_b32 s{sT[0]}, s{sIDX}, 5
        s_lshl_b32 s{sT[0]}, s{sT[0]}, 12
        s_add_u32 s{sT[0]}, s{sT[0]}, {W_ROW}
        s_cmp_eq_u32 s{sROLE}, 1
        s_cbranch_scc1 {ldn}
        v_lshl_add_u32 v5, v0, 3, s{sT[0]}
        {top}:
        buffer_load_dwordx2 v[32:33], v5, {srd(sWS)}, 0 offen sc1
        s_waitcnt vmcnt(0)
        v_cmp_eq_u32 vcc, s{sTAG}, v33
        s_cmp_eq_u64 vcc, exec
        s_cbranch_scc1 {done}""")
        self.spin_guard(top, done)
        e(f"""{done}:
        v_lshlrev_b32 v5, 1, v0
        v_add_u32 v5, {L_AV}, v5
        ds_write_b16 v5, v32
        v_lshrrev_b32 v6, 4, v1
        v_lshlrev_b32 v6, 2, v6
        v_bfe_u32 v7, v1, 2, 2
        v_add_u32 v6, v6, v7
        v_lshlrev_b32 v6, 4, v6
        v_and_b32 v7, 1, v1
        v_lshl_add_u32 v6, v7, 3, v6
        v_bfe_u32 v7, v1, 1, 1
        v_lshl_add_u32 v6, v7, 13, v6
        s_lshl_b32 s{sT[0]}, s{sWAVE}, 10
        s_add_u32 s{sT[0]}, s{sT[0]}, {L_MW}
        v_add_u32 v6, s{sT[0]}, v6
        v_lshrrev_b32 v7, 4, v1
        v_lshlrev_b32 v7, 3, v7
        s_lshl_b32 s{sT[0]}, s{sWAVE}, 7
        s_add_u32 s{sT[0]}, s{sT[0]}, {L_AV}
        v_add_u32 v7, s{sT[0]}, v7
        s_waitcnt vmcnt(0) lgkmcnt(0)
        s_barrier""")
        self.stamp('row_seen')
        for n in range(2):
            e(f"""ds_read_b64_tr_b16 v[{64+4*n}:{65+4*n}], v6 offset:{n*512}
            ds_read_b64_tr_b16 v[{66+4*n}:{67+4*n}], v6 offset:{n*512 + 256}
            ds_read_b64 v[{72+4*n}:{73+4*n}], v7 offset:{n*64}
            ds_read_b64 v[{74+4*n}:{75+4*n}], v7 offset:{n*64 + 32}""")
        e("""s_waitcnt lgkmcnt(0)
        v_mfma_f32_16x16x32_bf16 v[32:35], v[72:75], v[64:67], 0
        v_mfma_f32_16x16x32_bf16 v[32:35], v[76:79], v[68:71], v[32:35]""")
        self.part_reduce()
        e(f"s_cmp_lg_u32 s{sWAVE}, 0\ns_cbranch_scc1 {lfin}")
        self.bf16r(32, 32)
        e("""s_nop 1
        v_mov_b32_dpp v33, v32 row_ror:8 row_mask:0xf bank_mask:0xf
        v_mul_f32 v34, 0xbfb8aa3b, v32
        v_exp_f32 v34, v34
        s_nop 0
        v_add_f32 v34, 1.0, v34
        v_rcp_f32 v34, v34
        s_nop 0
        v_mul_f32 v34, v32, v34""")
        self.bf16r(34, 34)
        e("v_mul_f32 v34, v34, v33")
        self.bf16r(34, 34)
        e(f"""v_lshrrev_b32 v34, 16, v34
        v_mov_b32 v35, s{sTAG}
        s_lshl_b32 s{sT[0]}, s{sFS}, 7
        s_add_u32 s{sT[0]}, s{sT[0]}, {W_ACT}
        v_lshl_add_u32 v5, v1, 3, s{sT[0]}
        s_mov_b64 exec, 0xff
        buffer_store_dwordx2 v[34:35], v5, {srd(sWS)}, 0 offen sc1
        s_branch {lfin}""")
        top, done = self.lab('aq'), self.lab('aqd')
        top0, done0 = self.lab('r0'), self.lab('r0d')
        e(f"""{ldn}:
        s_lshl_b32 s{sT[1]}, s{sFS}, 7
        s_add_u32 s{sT[0]}, s{sT[0]}, s{sT[1]}
        v_and_b32 v6, 15, v1
        v_lshl_add_u32 v8, v6, 3, s{sT[0]}
        s_add_u32 s{sT[1]}, s{sT[1]}, {W_MODG + 2560*8}
        v_lshl_add_u32 v9, v6, 3, s{sT[1]}
        {top0}:
        buffer_load_dwordx2 v[40:41], v8, {srd(sWS)}, 0 offen sc1
        buffer_load_dwordx2 v[42:43], v9, {srd(sWS)}, 0 offen sc1
        s_waitcnt vmcnt(0)
        v_cmp_eq_u32 vcc, s{sTAG}, v41
        v_cmp_eq_u32 s[{sT[6]}:{sT[7]}], s{sTAG}, v43
        s_and_b64 vcc, vcc, s[{sT[6]}:{sT[7]}]
        s_cmp_eq_u64 vcc, exec
        s_cbranch_scc1 {done0}""")
        self.spin_guard(top0, done0)
        e(f"""{done0}:
        v_lshrrev_b32 v5, 3, v0
        v_lshlrev_b32 v5, 7, v5
        v_and_b32 v6, 7, v0
        v_lshl_add_u32 v5, v6, 3, v5
        v_add_u32 v5, {W_ACT}, v5
        s_mov_b32 s{sT[2]}, 8192
        s_mov_b32 s{sT[3]}, 16384
        s_cmp_lt_u32 s{sWAVE}, 4
        s_cselect_b32 s{sT[4]}, s{sC24K}, s{sC16K}
        {top}:
        buffer_load_dwordx2 v[32:33], v5, {srd(sWS)}, 0 offen sc1
        buffer_load_dwordx2 v[34:35], v5, {srd(sWS)}, s{sT[2]} offen sc1
        buffer_load_dwordx2 v[36:37], v5, {srd(sWS)}, s{sT[3]} offen sc1
        buffer_load_dwordx2 v[38:39], v5, {srd(sWS)}, s{sT[4]} offen sc1
        s_waitcnt vmcnt(0)
        v_cmp_eq_u32 vcc, s{sTAG}, v33
        v_cmp_eq_u32 s[{sT[6]}:{sT[7]}], s{sTAG}, v35
        s_and_b64 vcc, vcc, s[{sT[6]}:{sT[7]}]
        v_cmp_eq_u32 s[{sT[6]}:{sT[7]}], s{sTAG}, v37
        s_and_b64 vcc, vcc, s[{sT[6]}:{sT[7]}]
        v_cmp_eq_u32 s[{sT[6]}:{sT[7]}], s{sTAG}, v39
        s_and_b64 vcc, vcc, s[{sT[6]}:{sT[7]}]
        s_cmp_eq_u64 vcc, exec
        s_cbranch_scc1 {done}""")
        self.spin_guard(top, done)
        e(f"""{done}:
        v_lshlrev_b32 v5, 1, v0
        v_add_u32 v5, {L_AV}, v5
        ds_write_b16 v5, v32
        ds_write_b16 v5, v34 offset:1024
        ds_write_b16 v5, v36 offset:2048
        s_cmp_lt_u32 s{sWAVE}, 4
        s_cbranch_scc0 {done}n
        ds_write_b16 v5, v38 offset:3072
        {done}n:
        s_mul_i32 s{sT[0]}, s{sWAVE}, 7168
        s_add_u32 s{sT[0]}, s{sT[0]}, {L_MW}
        v_lshl_add_u32 v6, v1, 3, s{sT[0]}
        s_mul_i32 s{sT[0]}, s{sWAVE}, 448
        s_add_u32 s{sT[0]}, s{sT[0]}, {L_AV}
        v_lshrrev_b32 v7, 4, v1
        v_lshl_add_u32 v7, v7, 3, s{sT[0]}
        s_waitcnt vmcnt(0) lgkmcnt(0)
        s_barrier""")
        self.stamp('act_seen')
        self.gemv16(list(range(7)), 6, 7, 0, 0, 32, 64, 96)
        self.part_reduce()
        e(f"s_cmp_lg_u32 s{sWAVE}, 0\ns_cbranch_scc1 {lfin}")
        self.bf16r(32, 32)
        e(f"""s_and_b32 s{sT[0]}, s{sKEY}, 0xffff0000
        s_bitcmp1_b32 s{sT[0]}, 31
        s_cselect_b32 s{sT[1]}, 0x80000000, s{sMASKHI}
        s_xor_b32 s{sT[0]}, s{sT[0]}, s{sT[1]}
        v_mov_b32 v33, s{sT[0]}
        v_mul_f32 v33, 0xbfb8aa3b, v33
        v_exp_f32 v33, v33
        s_nop 0
        v_add_f32 v33, 1.0, v33
        v_rcp_f32 v33, v33
        s_nop 0""")
        self.bf16r(33, 33)
        e("v_mul_f32 v32, v32, v33")
        self.bf16r(32, 32)
        e(f"""v_lshlrev_b32 v34, 16, v40
        v_and_b32 v35, s{sMASKHI}, v40
        v_add_f32 v32, v32, v34""")
        self.bf16r(32, 32)
        e("v_mul_f32 v32, v32, v42")
        self.bf16r(32, 32)
        e(f"""v_add_f32 v32, v32, v35
        v_cvt_pk_bf16_f32 v32, v32, v32
        s_lshl_b32 s{sT[0]}, s{sIDX}, 10
        s_lshl_b32 s{sT[1]}, s{sFS}, 5
        s_add_u32 s{sT[0]}, s{sT[0]}, s{sT[1]}
        v_lshl_add_u32 v5, v1, 1, s{sT[0]}
        s_mov_b64 exec, 0xffff
        buffer_store_short v32, v5, {srd(sOUT)}, 0 offen""")

    def part_reduce(self):
        e = self.e
        e(f"""s_lshl_b32 s{sT[0]}, s{sWAVE}, 6
        s_add_u32 s{sT[0]}, s{sT[0]}, {L_PART}
        v_and_b32 v5, 15, v1
        v_lshl_add_u32 v8, v5, 2, s{sT[0]}
        v_lshlrev_b32 v5, 2, v5
        v_add_u32 v5, {L_PART}, v5
        s_nop 4
        s_mov_b64 exec, 0xffff
        ds_write_b32 v8, v32
        s_mov_b64 exec, -1
        s_waitcnt lgkmcnt(0)
        s_barrier""")
        for w in range(8): e(f"ds_read_b32 v{64+w}, v5 offset:{w*64}")
        e("""s_waitcnt lgkmcnt(0)
        v_add_f32 v64, v64, v65
        v_add_f32 v66, v66, v67
        v_add_f32 v68, v68, v69
        v_add_f32 v70, v70, v71
        v_add_f32 v64, v64, v66
        v_add_f32 v68, v68, v70
        v_add_f32 v32, v64, v68""")

    def finish(self):
        e = self.e
        e("L_fin:\ns_mov_b64 exec, -1")
        if self.stamps:
            self.stamp('end')
            e(f"""s_lshl_b32 s{sT[0]}, s2, 3
            s_add_u32 s{sT[0]}, s{sT[0]}, s{sWAVE}
            s_lshl_b32 s{sT[0]}, s{sT[0]}, 8
            s_add_u32 s{sT[0]}, s{sT[0]}, {W_STAMP}
            v_lshl_add_u32 v10, v1, 2, s{sT[0]}
            buffer_store_dword v{vSTAMP}, v10, {srd(sWS)}, 0 offen
            s_mov_b64 exec, -1""")
        e(f"""s_cmp_lg_u32 s2, 0
        s_cbranch_scc1 L_end
        s_cmp_lg_u32 s{sWAVE}, 0
        s_cbranch_scc1 L_end
        v_mov_b32 v10, {W_EPOCH}
        v_mov_b32 v11, s{sTAG}
        s_mov_b64 exec, 1
        buffer_store_dword v11, v10, {srd(sWS)}, 0 offen sc1
        L_end:
        s_endpgm""")

    def build(self):
        e = self.e
        self.entry()
        self.stamp('start')
        l0 = self.lab('notw0')
        e(f"s_cmp_lg_u32 s{sWAVE}, 0\ns_cbranch_scc1 {l0}")
        self.p1_issue()
        self.x_issue()
        e(f"s_barrier\ns_branch {l0}j\n{l0}:\ns_barrier")
        self.x_issue()
        self.w_issue()
        e(f"{l0}j:")
        self.tag_finish()
        self.stamp('issued')
        self.p1_compute()
        self.stamp('p1_done')
        self.x_transpose_stats()
        self.stamp('x_done')
        self.mod_poll()
        self.stamp('mod_seen')
        self.p2_main()
        self.p2_epilogue()
        self.wo_issue()
        self.stamp('p2_stored')
        self.drain_barrier(16)
        self.flag_store(W_FLAG2)
        self.stamp('p2_flag')
        self.wo_frags()
        self.stamp('wo_done')
        self.p3_prologue()
        self.p3_loop()
        self.p3_epilogue()
        self.drain_barrier(0)
        self.flag_store(W_FLAGO)
        self.stamp('o_flag')
        self.tail_prefetch()
        self.p4_main()
        self.p4_epilogue()
        self.argmax_global()
        self.moe()
        self.finish()
        return self.L

import struct
def f32bits(x): return struct.unpack('<I', struct.pack('<f', x))[0]

def emit(stop=99, stamps=False):
    g = G(stop, stamps)
    L = g.build()
    L, npad, problems = hazard_pass(L)
    for p in problems: print("HAZARD:", p, file=sys.stderr)
    ref_head = open('cdna_kernels/' + NAME + '.s.ref').read().split('; Override launch geometry')[0]
    txt = ref_head + f"""; adaLN-conditioned MHA block + top-1 token MoE block, one persistent launch (256 workgroups x 512 threads)
; @launch grid=(256,1,1) block=(512,1,1) lds={LDS_SIZE}
.amdgcn_target "amdgcn-amd-amdhsa--gfx950"
.text
.globl {NAME}_kernel
.p2align 8
.type {NAME}_kernel,@function
{NAME}_kernel:
""" + "\n".join(L) + f"""
.section .rodata,"a"
.p2align 6
.amdhsa_kernel {NAME}_kernel
  .amdhsa_next_free_vgpr 256
  .amdhsa_next_free_sgpr 102
  .amdhsa_accum_offset 192
  .amdhsa_group_segment_fixed_size 0
  .amdhsa_kernarg_size 104
  .amdhsa_user_sgpr_count 2
  .amdhsa_user_sgpr_kernarg_segment_ptr 1
  .amdhsa_system_sgpr_workgroup_id_x 1
.end_amdhsa_kernel
"""
    return txt, g.names

if __name__ == '__main__':
    import argparse
    ap = argparse.ArgumentParser()
    ap.add_argument('-o', default='k.s')
    ap.add_argument('--stamps', action='store_true')
    ap.add_argument('--stop', type=int, default=99)
    a = ap.parse_args()
    txt, names = emit(a.stop, a.stamps)
    open(a.o, 'w').write(txt)
    print('written', a.o, len(txt), 'bytes; stamps:', names)
```
